```python
import torch

def _softmax(x, axis=-1):
    return torch.softmax(x, dim=axis)
def _gelu(x):
    return torch.nn.functional.gelu(x, approximate="tanh")
def _silu(x):
    return torch.nn.functional.silu(x)
def _sigmoid(x):
    return torch.sigmoid(x)
def _layernorm(x, axis=-1, eps=1e-5):
    m = x.mean(dim=axis, keepdim=True)
    v = x.var(dim=axis, keepdim=True, unbiased=False)
    return (x - m) / torch.sqrt(v + eps)
def _scatter_add(tgt, idx, src, axis=0):
    return tgt.clone().index_add_(axis, idx, src)
def _segment_sum(src, seg, n):
    out = torch.zeros((n,) + src.shape[1:], dtype=src.dtype)
    return out.index_add_(0, seg, src)
def _pad(x, pw):
    flat = tuple(v for pair in reversed(pw) for v in pair)
    return torch.nn.functional.pad(x, flat)

kernel_name = 'standalone__detection_seg_fpn_lateral__vision'

def setup_inputs():

    _w = (lambda a: (lambda t: t.to(torch.bfloat16) if t.is_floating_point() else t)(torch.as_tensor(a)))
    H = W = (224 // 2) * 2
    C = 96
    k = 7
    return {
        "c_fine": _w((lambda *s: torch.randn(*s, dtype=torch.bfloat16) * 0.05)(1, H, W, C)),
        "p_coarse": _w((lambda *s: torch.randn(*s, dtype=torch.bfloat16) * 0.05)(1, H // 2, W // 2, C)),
        "w_lat": _w((lambda *s: torch.randn(*s, dtype=torch.bfloat16) * 0.05)(C, C)),
        "w_out": _w((lambda *s: torch.randn(*s, dtype=torch.bfloat16) * 0.05)(k, k, C, C)),
    }

def reference(c_fine, p_coarse, w_lat, w_out):
    B, H, W, C = c_fine.shape
    k = 7
    lat = torch.einsum("bhwc,cd->bhwd", c_fine, w_lat)
    up = (lambda x, n, axis: torch.repeat_interleave(x, n, dim=axis))((lambda x, n, axis: torch.repeat_interleave(x, n, dim=axis))(p_coarse, 2, axis=1), 2, axis=2)
    m = lat + up
    pad = k // 2
    mp = _pad(m, ((0, 0), (pad, pad), (pad, pad), (0, 0)))
    o = None
    for di in range(k):
        for dj in range(k):
            t = torch.einsum("bhwc,cd->bhwd", mp[:, di:di + H, dj:dj + W, :], w_out[di, dj])
            o = t if o is None else o + t
    return o
```

```python
import sys
scale = float(sys.argv[1]) if len(sys.argv)>1 else 1.0
extra_dummy = int(sys.argv[2]) if len(sys.argv)>2 else 0
import struct
def f32(x): return '0x%08x'%struct.unpack('<I',struct.pack('<f',x))[0]
PW=240
MOFF=0
WOFF=16*1024*1024
o=[]
A=o.append
nA = 230*15
nW = 49*6*3
A(f'; @launch kernel=prep_kernel grid=({nA+nW},1,1) block=(64,1,1) lds=0')
for i in range(extra_dummy): A(f'; @launch kernel=dummy_kernel grid=(256,1,1) block=(64,1,1) lds=0')
A(f'; @launch kernel=conv_kernel grid=(3136,1,1) block=(64,1,1) lds=0')
A('.amdgcn_target "amdgcn-amd-amdhsa--gfx950"\n.text')
def srd(d,b,n):
    A(f's_mov_b32 s{d}, s{b}\ns_mov_b32 s{d+1}, s{b+1}\ns_mov_b32 s{d+2}, {n}\ns_mov_b32 s{d+3}, 0x20000')
A('.globl prep_kernel\n.p2align 8\n.type prep_kernel,@function\nprep_kernel:')
A(f's_cmp_ge_u32 s2, {nA+nW}\ns_cbranch_scc1 P_DONE')
A('s_load_dwordx8 s[4:11], s[0:1], 0\ns_load_dwordx2 s[12:13], s[0:1], 48\ns_waitcnt lgkmcnt(0)')
srd(16,4,9633792); srd(20,6,2408448); srd(24,8,18432); srd(28,10,903168); srd(32,12,268435456)
A('v_and_b32 v1, 15, v0\nv_lshrrev_b32 v2, 4, v0')
A(f's_cmp_ge_u32 s2, {nA}\ns_cbranch_scc1 P_W')
A(f's_mov_b32 s40, {(2**32+14)//15}\ns_mul_hi_u32 s41, s2, s40\ns_mul_i32 s42, s41, 15\ns_sub_u32 s42, s2, s42')
A('s_lshl_b32 s42, s42, 4')
A('v_add_u32 v3, s42, v1')
A('v_subrev_u32 v4, 3, v3')
A('s_sub_u32 s43, s41, 3')
A('v_mov_b32 v5, s43')
A('v_cmp_gt_u32 vcc, 224, v4\ns_mov_b32 s50, 224\nv_cmp_gt_u32 s[44:45], s50, v5\ns_and_b64 vcc, vcc, s[44:45]')
A('v_mul_u32_u24 v6, 224, v5\nv_add_u32 v6, v6, v4\nv_mul_u32_u24 v6, 192, v6\nv_lshl_add_u32 v6, v2, 4, v6')
A('v_mov_b32 v7, 0x7f000000\nv_cndmask_b32 v6, v7, v6, vcc')
A('v_lshrrev_b32 v8, 1, v5\nv_lshrrev_b32 v9, 1, v4\nv_mul_u32_u24 v8, 112, v8\nv_add_u32 v8, v8, v9\nv_mul_u32_u24 v8, 192, v8\nv_lshl_add_u32 v8, v2, 3, v8\nv_cndmask_b32 v8, v7, v8, vcc')
for ks in range(3): A(f'buffer_load_dwordx4 v[{12+4*ks}:{15+4*ks}], v6, s[16:19], 0 offen offset:{ks*64}')
for nt in range(6): A(f'buffer_load_dwordx2 v[{24+2*nt}:{25+2*nt}], v8, s[20:23], 0 offen offset:{nt*32}')
A('v_mul_u32_u24 v10, 1536, v2\nv_lshl_add_u32 v10, v1, 1, v10')
A(f's_mul_i32 s46, s41, {PW}\nv_add_u32 v11, s46, v3\nv_mul_u32_u24 v11, 192, v11\nv_lshl_add_u32 v11, v2, 3, v11')
for nt in range(6):
    for r in range(4): A(f'v_mov_b32 v{40+r}, 0')
    for ks in range(3):
        A(f's_mov_b32 s47, {ks*32*192+nt*32}')
        for i in range(8):
            A(f'buffer_load_ushort v{48+i}, v10, s[24:27], s47 offen offset:{i*192}')
        A('s_waitcnt vmcnt(0)')
        for i in range(4): A(f'v_lshl_or_b32 v{36+i}, v{49+2*i}, 16, v{48+2*i}')
        A('s_nop 1')
        A(f'v_mfma_f32_16x16x32_bf16 v[40:43], v[36:39], v[{12+4*ks}:{15+4*ks}], v[40:43]')
        A('s_nop 7\ns_nop 7')
    p=24+2*nt
    A(f'v_lshlrev_b32 v44, 16, v{p}\nv_and_b32 v45, 0xffff0000, v{p}\nv_lshlrev_b32 v46, 16, v{p+1}\nv_and_b32 v47, 0xffff0000, v{p+1}')
    for r in range(4): A(f'v_add_f32 v{40+r}, v{40+r}, v{44+r}')
    A('v_cvt_pk_bf16_f32 v44, v40, v41\nv_cvt_pk_bf16_f32 v45, v42, v43')
    A(f'buffer_store_dwordx2 v[44:45], v11, s[32:35], 0 offen offset:{nt*32}')
    A('s_waitcnt vmcnt(0)')
A('s_branch P_DONE')
A('P_W:')
A(f's_sub_u32 s41, s2, {nA}\ns_mov_b32 s40, {(2**32+5)//6}\ns_mul_hi_u32 s42, s41, s40\ns_mul_i32 s43, s42, 6\ns_sub_u32 s43, s41, s43')
A('s_mul_i32 s47, s42, 6144\ns_lshl_b32 s43, s43, 5\ns_add_u32 s47, s47, s43')
A('v_mul_u32_u24 v10, 1536, v2\nv_lshl_add_u32 v10, v1, 1, v10')
for i in range(8):
    A(f'buffer_load_ushort v{48+i}, v10, s[28:31], s47 offen offset:{i*192}')
A(f's_lshl_b32 s41, s41, 10\ns_add_u32 s41, s41, {WOFF}\nv_lshlrev_b32 v11, 4, v0\ns_waitcnt vmcnt(0)')
for i in range(4): A(f'v_lshl_or_b32 v{36+i}, v{49+2*i}, 16, v{48+2*i}')
A('buffer_store_dwordx4 v[36:39], v11, s[32:35], s41 offen\ns_waitcnt vmcnt(0)')
A('P_DONE:\ns_endpgm')
if extra_dummy:
    A('.globl dummy_kernel\n.p2align 8\n.type dummy_kernel,@function\ndummy_kernel:\ns_endpgm')
A('.globl conv_kernel\n.p2align 8\n.type conv_kernel,@function\nconv_kernel:')
A('s_cmp_ge_u32 s2, 3136\ns_cbranch_scc1 C_DONE')
A('s_load_dwordx2 s[4:5], s[0:1], 32\ns_load_dwordx2 s[12:13], s[0:1], 48\ns_waitcnt lgkmcnt(0)')
srd(16,4,9633792); srd(32,12,268435456)
A('v_and_b32 v1, 15, v0\nv_lshrrev_b32 v2, 4, v0')
A(f's_mov_b32 s40, {(2**32+13)//14}\ns_mul_hi_u32 s41, s2, s40\ns_mul_i32 s42, s41, 14\ns_sub_u32 s42, s2, s42\ns_lshl_b32 s42, s42, 4')
A(f's_mul_i32 s46, s41, {PW}\ns_add_u32 s46, s46, s42\nv_add_u32 v3, s46, v1\nv_mul_u32_u24 v3, 192, v3\nv_lshl_add_u32 v3, v2, 4, v3')
A('s_mul_i32 s46, s41, 224\ns_add_u32 s46, s46, s42\nv_add_u32 v4, s46, v1\nv_mul_u32_u24 v4, 192, v4\nv_lshl_add_u32 v4, v2, 3, v4')
A('v_lshlrev_b32 v5, 4, v0')
for r in range(24): A(f'v_mov_b32 v{40+r}, 0')
A(f's_mov_b32 s50, 0\ns_mov_b32 s51, {WOFF}')
A('L_DI:\ns_mov_b32 s52, 0')
A('L_DJ:')
A(f's_mul_i32 s53, s50, {PW*192}\ns_mul_i32 s54, s52, 192\ns_add_u32 s53, s53, s54')
for ks in range(3):
    A(f'buffer_load_dwordx4 v[8:11], v3, s[32:35], s53 offen offset:{ks*64}')
    for nt in range(6):
        A(f'buffer_load_dwordx4 v[{12+4*nt}:{15+4*nt}], v5, s[32:35], s51 offen')
        A('s_add_u32 s51, s51, 1024')
    A('s_waitcnt vmcnt(0)')
    for nt in range(6):
        A(f'v_mfma_f32_16x16x32_bf16 v[{40+4*nt}:{43+4*nt}], v[{12+4*nt}:{15+4*nt}], v[8:11], v[{40+4*nt}:{43+4*nt}]')
A('s_add_u32 s52, s52, 1\ns_cmp_lt_u32 s52, 7\ns_cbranch_scc1 L_DJ')
A('s_add_u32 s50, s50, 1\ns_cmp_lt_u32 s50, 7\ns_cbranch_scc1 L_DI')
A('s_nop 7\ns_nop 7')
for nt in range(6):
    if scale!=1.0:
        for r in range(4): A(f'v_mul_f32 v{40+4*nt+r}, {f32(scale)}, v{40+4*nt+r}')
    A(f'v_cvt_pk_bf16_f32 v{8+2*nt}, v{40+4*nt}, v{41+4*nt}\nv_cvt_pk_bf16_f32 v{9+2*nt}, v{42+4*nt}, v{43+4*nt}')
    A(f'buffer_store_dwordx2 v[{8+2*nt}:{9+2*nt}], v4, s[16:19], 0 offen offset:{nt*32}')
A('s_waitcnt vmcnt(0)\nC_DONE:\ns_endpgm')
A('.section .rodata,"a"')
for k in ['prep_kernel','conv_kernel']+(['dummy_kernel'] if extra_dummy else []):
    A(f'''.p2align 6
.amdhsa_kernel {k}
  .amdhsa_next_free_vgpr 64
  .amdhsa_next_free_sgpr 102
  .amdhsa_accum_offset 64
  .amdhsa_group_segment_fixed_size 0
  .amdhsa_kernarg_size 56
  .amdhsa_user_sgpr_count 2
  .amdhsa_user_sgpr_kernarg_segment_ptr 1
  .amdhsa_system_sgpr_workgroup_id_x 1
.end_amdhsa_kernel''')
print('\n'.join(o))
```
